```python
import torch

def _softmax(x, axis=-1):
    return torch.softmax(x, dim=axis)
def _gelu(x):
    return torch.nn.functional.gelu(x, approximate="tanh")
def _silu(x):
    return torch.nn.functional.silu(x)
def _sigmoid(x):
    return torch.sigmoid(x)
def _layernorm(x, axis=-1, eps=1e-5):
    m = x.mean(dim=axis, keepdim=True)
    v = x.var(dim=axis, keepdim=True, unbiased=False)
    return (x - m) / torch.sqrt(v + eps)
def _scatter_add(tgt, idx, src, axis=0):
    return tgt.clone().index_add_(axis, idx, src)
def _segment_sum(src, seg, n):
    out = torch.zeros((n,) + src.shape[1:], dtype=src.dtype)
    return out.index_add_(0, seg, src)
def _pad(x, pw):
    flat = tuple(v for pair in reversed(pw) for v in pair)
    return torch.nn.functional.pad(x, flat)

kernel_name = 'standalone__gqa_softmax__prompt'

def setup_inputs():

    _w = (lambda a: (lambda t: t.to(torch.bfloat16) if t.is_floating_point() else t)(torch.as_tensor(a)))
    B, Hq, Hkv, Sq, Sk, D = 1, 32, 32, 2048, 2048, 192
    return {
        "q": _w((lambda *s: torch.randn(*s, dtype=torch.bfloat16) * 0.8)(B, Hq, Sq, D)),
        "k": _w((lambda *s: torch.randn(*s, dtype=torch.bfloat16) * 0.8)(B, Hkv, Sk, D)),
        "v": _w((lambda *s: torch.randn(*s, dtype=torch.bfloat16) * 0.05)(B, Hkv, Sk, D)),
    }

def reference(q, k, v):
    B, Hq, Sq, D = q.shape
    Hkv = k.shape[1]
    rep = Hq // Hkv
    k = (lambda x, n, axis: torch.repeat_interleave(x, n, dim=axis))(k, rep, axis=1)
    v = (lambda x, n, axis: torch.repeat_interleave(x, n, dim=axis))(v, rep, axis=1)
    scale = D ** -0.5
    scores = torch.einsum("bhqd,bhkd->bhqk", q, k) * scale
    p = _softmax(scores, axis=-1)
    return torch.einsum("bhqk,bhkd->bhqd", p, v)
```

```python
import sys, argparse
ap = argparse.ArgumentParser()
ap.add_argument('--qk', default='afix')
ap.add_argument('--pv', default='afix')
ap.add_argument('--shape', type=int, default=16)
ap.add_argument('--accv', type=int, default=0)
a = ap.parse_args()
out = []
A = out.append
A('; @launch grid=(256,1,1) block=(256,1,1) lds=0')
A('.amdgcn_target "amdgcn-amd-amdhsa--gfx950"')
A('.text')
A('.globl standalone__gqa_softmax__prompt_kernel')
A('.p2align 8')
A('.type standalone__gqa_softmax__prompt_kernel,@function')
A('standalone__gqa_softmax__prompt_kernel:')
A('s_cmp_ge_u32 s2, 256')
A('s_cbranch_scc1 L_end')
A('s_load_dwordx2 s[4:5], s[0:1], 0')
A('s_load_dwordx2 s[6:7], s[0:1], 32')
A('s_waitcnt lgkmcnt(0)')
A('s_mov_b32 s8, s4'); A('s_mov_b32 s9, s5'); A('s_mov_b32 s10, 25165824'); A('s_mov_b32 s11, 0x20000')
A('s_mov_b32 s12, s6'); A('s_mov_b32 s13, s7'); A('s_mov_b32 s14, 4096'); A('s_mov_b32 s15, 0x20000')
A('s_mul_i32 s3, s2, 98304')
A('v_lshlrev_b32 v1, 4, v0')
A('v_mov_b32 v250, v0')
def qreg(j, s):
    i = j * 6 + s
    if i < 16: return f'a[{192+4*i}:{195+4*i}]'
    i -= 16
    return f'v[{200+4*i}:{203+4*i}]'
n = 0
for i in range(16):
    A(f's_add_u32 s16, s3, {n*4096}'); n += 1
    A(f'buffer_load_dwordx4 a[{192+4*i}:{195+4*i}], v1, s[8:11], s16 offen')
for i in range(8):
    A(f's_add_u32 s16, s3, {n*4096}'); n += 1
    A(f'buffer_load_dwordx4 v[{200+4*i}:{203+4*i}], v1, s[8:11], s16 offen')
for i in range(28):
    A(f's_add_u32 s16, s3, {(i%24)*4096 + 16*(i//24)}')
    A(f'buffer_load_dwordx4 v[{64+4*i}:{67+4*i}], v1, s[8:11], s16 offen')
for i in range(2, 64):
    A(f'v_mov_b32 v{i}, 0')
for i in range(0, 192):
    A(f'v_accvgpr_write_b32 a{i}, 0')
A('s_waitcnt vmcnt(0)')
for i in range(160, 176):
    A(f'v_and_b32 v{i}, 0x7fff7fff, v{i}')
A('v_mov_b32 v0, 0'); A('v_mov_b32 v1, 0')
A('s_barrier')
A('s_memtime s[20:21]')
A('s_memrealtime s[22:23]')
A('s_waitcnt lgkmcnt(0)')
A('s_mov_b32 s17, 0')
A('.p2align 6')
A('L_loop:')
def K(kb, s):
    i = kb * 6 + s
    return f'v[{64+4*i}:{67+4*i}]'
def V(db):
    return f'v[{112+4*db}:{115+4*db}]'
def P(j): return f'v[{160+4*j}:{163+4*j}]'
def S(kb, j):
    r = 4 * (kb * 4 + j)
    return f'v[{r}:{r+3}]'
def O(db, j):
    r = 4 * (db * 4 + j)
    return f'a[{r}:{r+3}]'
def K32(s): return f'v[{64+4*s}:{67+4*s}]'
def V32(db, ks):
    i = db * 2 + ks
    return f'v[{112+4*i}:{115+4*i}]'
def P32(x, ks):
    i = x * 2 + ks
    return f'v[{160+4*i}:{163+4*i}]'
def S32(x): return f'v[{16*x}:{16*x+15}]'
def O32(db, x):
    r = 16 * (db * 2 + x)
    return f'a[{r}:{r+15}]'
def q32(x, s): return qreg((x*12+s)//6, (x*12+s)%6)
for rep in range(2 if a.shape == 32 else 0):
    if a.qk == 'afix': order = [(s, x) for s in range(12) for x in range(2)]
    elif a.qk == 'chain': order = [(s, x) for x in range(2) for s in range(12)]
    for (s, x) in order:
        A(f'v_mfma_f32_32x32x16_bf16 {S32(x)}, {K32(s)}, {q32(x,s)}, {S32(x)}')
    if a.pv == 'afix': order = [(db, ks, x) for ks in range(2) for db in range(6) for x in range(2)]
    elif a.pv == 'chain': order = [(db, ks, x) for db in range(6) for x in range(2) for ks in range(2)]
    elif a.pv == 'chain2': order = [(db, ks, x) for x in range(2) for db in range(6) for ks in range(2)]
    for (db, ks, x) in order:
        A(f'v_mfma_f32_32x32x16_bf16 {O32(db,x)}, {V32(db,ks)}, {P32(x,ks)}, {O32(db,x)}')
for rep in range(2 if a.shape == 16 else 0):
    if a.qk == 'afix':
        order = [(kb, s, j) for s in range(6) for kb in range(2) for j in range(4)]
    elif a.qk == 'afix2':
        order = [(kb, s, j) for kb in range(2) for s in range(6) for j in range(4)]
    elif a.qk == 'chain':
        order = [(kb, s, j) for kb in range(2) for j in range(4) for s in range(6)]
    elif a.qk == 'bfix':
        order = [(kb, s, j) for s in range(6) for j in range(4) for kb in range(2)]
    for (kb, s, j) in order:
        A(f'v_mfma_f32_16x16x32_bf16 {S(kb,j)}, {K(kb,s)}, {qreg(j,s)}, {S(kb,j)}')
    if a.pv == 'chain':
        if rep == 1:
            for db in range(12):
                for j in range(4):
                    for t in range(2):
                        A(f'v_mfma_f32_16x16x32_bf16 {O(db,j)}, {V((db+6*t)%12)}, {P((j+t)%4)}, {O(db,j)}')
        continue
    if a.pv == 'afix':
        order = [(db, j) for db in range(12) for j in range(4)]
    else:
        order = [(db, j) for j in range(4) for db in range(12)]
    for (db, j) in order:
        A(f'v_mfma_f32_16x16x32_bf16 {O(db,j)}, {V(db)}, {P(j)}, {O(db,j)}')
A('s_add_u32 s17, s17, 1')
A('s_cmp_lt_u32 s17, 32')
A('s_cbranch_scc1 L_loop')
A('s_memtime s[24:25]')
A('s_memrealtime s[26:27]')
A('s_waitcnt lgkmcnt(0)')
A('s_sub_u32 s24, s24, s20')
A('s_sub_u32 s26, s26, s22')
A('v_mov_b32 v2, s24'); A('v_mov_b32 v3, s26')
A('s_cmp_lg_u32 s2, 0')
A('s_cbranch_scc1 L_end')
A('v_mov_b32 v4, 0')
A('v_cmp_eq_u32 vcc, 0, v250')
A('s_and_saveexec_b64 s[30:31], vcc')
A('s_cbranch_execz L_end')
A('buffer_store_dwordx2 v[2:3], v4, s[12:15], 0 offen')
A('s_waitcnt vmcnt(0)')
A('L_end:')
A('s_endpgm')
A('.section .rodata,"a"')
A('.p2align 6')
A('.amdhsa_kernel standalone__gqa_softmax__prompt_kernel')
A('  .amdhsa_next_free_vgpr 512')
A('  .amdhsa_next_free_sgpr 102')
A('  .amdhsa_accum_offset 256')
A('  .amdhsa_group_segment_fixed_size 0')
A('  .amdhsa_kernarg_size 48')
A('  .amdhsa_user_sgpr_count 2')
A('  .amdhsa_user_sgpr_kernarg_segment_ptr 1')
A('  .amdhsa_system_sgpr_workgroup_id_x 1')
A('.end_amdhsa_kernel')
print('\n'.join(out))
```

```python
import sys, argparse
ap = argparse.ArgumentParser()
ap.add_argument('--dma', type=int, default=6)
ap.add_argument('--stagger', type=int, default=0)
ap.add_argument('--fill', type=int, default=0)
ap.add_argument('--dsk', type=int, default=0)
ap.add_argument('--dsv', type=int, default=0)
ap.add_argument('--barrier', type=int, default=0)
ap.add_argument('--nowait', type=int, default=0)
ap.add_argument('--barpos', type=int, default=-1)
ap.add_argument('--vmn', type=int, default=-1)
ap.add_argument('--shape', type=int, default=16)
ap.add_argument('--glob', type=int, default=0)
a = ap.parse_args()
out = []
A = out.append
A('; @launch grid=(256,1,1) block=(256,1,1) lds=163840')
A('.amdgcn_target "amdgcn-amd-amdhsa--gfx950"')
A('.text')
A('.globl standalone__gqa_softmax__prompt_kernel')
A('.p2align 8')
A('.type standalone__gqa_softmax__prompt_kernel,@function')
A('standalone__gqa_softmax__prompt_kernel:')
A('s_cmp_ge_u32 s2, 256')
A('s_cbranch_scc1 L_end')
A('s_load_dwordx2 s[4:5], s[0:1], 0')
A('s_load_dwordx2 s[36:37], s[0:1], 8')
A('s_load_dwordx2 s[6:7], s[0:1], 32')
A('s_waitcnt lgkmcnt(0)')
A('s_mov_b32 s8, s4'); A('s_mov_b32 s9, s5'); A('s_mov_b32 s10, 25165824'); A('s_mov_b32 s11, 0x20000')
A('s_mov_b32 s12, s6'); A('s_mov_b32 s13, s7'); A('s_mov_b32 s14, 4096'); A('s_mov_b32 s15, 0x20000')
A('s_and_b32 s38, s2, 7'); A('s_lshl_b32 s38, s38, 2'); A('s_lshr_b32 s39, s2, 6'); A('s_add_u32 s38, s38, s39')
A('s_mul_i32 s38, s38, 786432')
A('s_add_u32 s40, s36, s38'); A('s_addc_u32 s41, s37, 0'); A('s_mov_b32 s42, 786432'); A('s_mov_b32 s43, 0x20000')
A('s_mul_i32 s3, s2, 98304')
A('v_lshlrev_b32 v1, 4, v0')
A('v_mov_b32 v250, v0')
A('v_lshrrev_b32 v249, 6, v0')
A('s_nop 1')
A('v_readfirstlane_b32 s44, v249')
A('v_and_b32 v248, 63, v0')
A('v_lshrrev_b32 v247, 3, v248')
A('v_mul_u32_u24 v247, 384, v247')
A('v_and_b32 v246, 7, v248')
A('v_lshlrev_b32 v246, 4, v246')
A('v_add_u32 v247, v247, v246')
A('s_mul_i32 s45, s44, 6144')
A('v_add_u32 v247, s45, v247')
A('v_lshlrev_b32 v245, 4, v248')
A('s_mul_i32 s46, s44, 6144')
for i in range(24):
    A(f's_add_u32 s16, s3, {i*4096}')
    A(f'buffer_load_dwordx4 a[{160+4*i}:{163+4*i}], v1, s[8:11], s16 offen')
for i in range(16):
    A(f's_add_u32 s16, s3, {i*4096}')
    A(f'buffer_load_dwordx4 v[{64+4*i}:{67+4*i}], v1, s[8:11], s16 offen')
for i in range(0, 64):
    A(f'v_mov_b32 v{i}, 0')
for i in range(128, 240):
    A(f'v_mov_b32 v{i}, 1.0')
for i in range(0, 160):
    A(f'v_accvgpr_write_b32 a{i}, 0')
A('s_waitcnt vmcnt(0)')
A('s_barrier')
A('s_memtime s[20:21]')
A('s_memrealtime s[22:23]')
A('s_waitcnt lgkmcnt(0)')
A('s_mov_b32 s17, 0')
A('s_mov_b32 s47, 0')
nvar = 4 if a.stagger else 1
if a.stagger:
    for w in range(1, 4):
        A(f's_cmp_eq_u32 s44, {w}')
        A(f's_cbranch_scc1 L_loop{w}')
fc = [0]
def plain():
    r = 128 + (fc[0] % 32); fc[0] += 1
    A(f'v_add_f32 v{r}, v{160 + (fc[0] % 32)}, v{96 + (fc[0]%32)}')
for w in range(nvar):
    A('.p2align 6')
    A(f'L_loop{w}:')
    nm = 96 if a.shape == 16 else 48
    step = nm // max(a.dma, 1)
    dmapos = {}
    for d in range(a.dma):
        p = (d * step + 2 + (w * (step // 4) if a.stagger else 0)) % nm
        dmapos[p] = d
    ring = 0
    for g in range(nm):
        if a.shape == 16:
            if g < 48:
                s, kb, x = g // 8, (g // 4) % 2, g % 4
                acc = 4 * (kb * 4 + x)
                fr = 64 + 4 * ((g // 4) % 8)
                A(f'v_mfma_f32_16x16x32_bf16 v[{acc}:{acc+3}], v[{fr}:{fr+3}], a[{160+24*x+4*s}:{163+24*x+4*s}], v[{acc}:{acc+3}]')
            else:
                s, x = (g - 48) // 4, g % 4
                blk = (s % 10) * 4 + x
                fr = 64 + 4 * ((g // 4) % 8)
                A(f'v_mfma_f32_16x16x32_bf16 a[{4*blk}:{4*blk+3}], v[{fr}:{fr+3}], v[{96+4*x}:{99+4*x}], a[{4*blk}:{4*blk+3}]')
            grp = g // 4; ing = g % 4
            per = 4
        else:
            if g < 24:
                s, x = g // 2, g % 2
                fr = 64 + 4 * ((g // 2) % 8)
                A(f'v_mfma_f32_32x32x16_bf16 v[{16*x}:{16*x+15}], v[{fr}:{fr+3}], a[{160+48*x+4*s}:{163+48*x+4*s}], v[{16*x}:{16*x+15}]')
            else:
                s, x = (g - 24) // 2, g % 2
                blk = (s % 5) * 2 + x
                fr = 64 + 4 * ((g // 2) % 8)
                A(f'v_mfma_f32_32x32x16_bf16 a[{16*blk}:{16*blk+15}], v[{fr}:{fr+3}], v[{96+4*x}:{99+4*x}], a[{16*blk}:{16*blk+15}]')
            grp = g // 2; ing = g % 2
            per = 2
        used = 0
        if g in dmapos:
            d = dmapos[g]
            A(f's_add_u32 m0, s46, {d*1024}')
            if a.glob:
                A(f'global_load_lds_dwordx4 v247, s[40:41] offset:{d*128}')
            else:
                A(f'buffer_load_dwordx4 v247, s[40:43], s47 offen offset:{(d%3)*128} lds')
            used = 2
        elif ing == 0 and grp < 12 and a.dsk:
            tgt = 200 + 4 * (grp % 4)
            A(f'ds_read_b128 v[{tgt}:{tgt+3}], v245 offset:{grp*1024}')
            used = 1
        elif ing in (0, 1) and grp >= 12 and a.dsv and (ing == 0 or per == 4):
            tgt = 200 + 4 * (grp % 4)
            A(f'ds_read_b64_tr_b16 v[{tgt+2*(ing%2)}:{tgt+2*(ing%2)+1}], v245 offset:{grp*1024 + 24576}')
            if per == 2:
                A(f'ds_read_b64_tr_b16 v[{tgt+2}:{tgt+3}], v245 offset:{grp*1024 + 24576 + 512}')
            used = 1
        if a.barrier and g == a.barpos:
            if not a.nowait: A(f's_waitcnt vmcnt({a.vmn if a.vmn >= 0 else a.dma})')
            else: A('s_nop 0')
            A('s_barrier')
            used = 2
        if a.fill:
            for _ in range(a.fill - used): plain()
    A('s_add_u32 s47, s47, 12288')
    A('s_and_b32 s47, s47, 0x7ffff')
    if a.barrier and a.barpos < 0:
        if not a.nowait: A(f's_waitcnt vmcnt({a.vmn if a.vmn >= 0 else a.dma})')
        A('s_barrier')
    A('s_add_u32 s17, s17, 1')
    A('s_cmp_lt_u32 s17, 64' )
    A(f's_cbranch_scc1 L_loop{w}')
    if w < nvar - 1: A('s_branch L_done')
A('L_done:')
A('s_memtime s[24:25]')
A('s_memrealtime s[26:27]')
A('s_waitcnt lgkmcnt(0) vmcnt(0)')
A('s_sub_u32 s24, s24, s20')
A('s_sub_u32 s26, s26, s22')
A('v_mov_b32 v2, s24'); A('v_mov_b32 v3, s26')
A('s_lshr_b32 s18, s2, 5')
A('s_and_b32 s19, s2, 31')
A('s_cmp_lg_u32 s19, 0')
A('s_cbranch_scc1 L_end')
A('s_lshl_b32 s18, s18, 5')
A('s_lshl_b32 s19, s44, 3')
A('s_add_u32 s18, s18, s19')
A('v_mov_b32 v4, s18')
A('v_cmp_eq_u32 vcc, 0, v248')
A('s_and_saveexec_b64 s[30:31], vcc')
A('s_cbranch_execz L_end')
A('buffer_store_dwordx2 v[2:3], v4, s[12:15], 0 offen')
A('s_waitcnt vmcnt(0)')
A('L_end:')
A('s_endpgm')
A('.section .rodata,"a"')
A('.p2align 6')
A('.amdhsa_kernel standalone__gqa_softmax__prompt_kernel')
A('  .amdhsa_next_free_vgpr 512')
A('  .amdhsa_next_free_sgpr 102')
A('  .amdhsa_accum_offset 256')
A('  .amdhsa_group_segment_fixed_size 0')
A('  .amdhsa_kernarg_size 48')
A('  .amdhsa_user_sgpr_count 2')
A('  .amdhsa_user_sgpr_kernarg_segment_ptr 1')
A('  .amdhsa_system_sgpr_workgroup_id_x 1')
A('.end_amdhsa_kernel')
print('\n'.join(out))
```
